```python
import torch

def _softmax(x, axis=-1):
    return torch.softmax(x, dim=axis)

def _gelu(x):
    return torch.nn.functional.gelu(x, approximate='tanh')

def _silu(x):
    return torch.nn.functional.silu(x)

def _sigmoid(x):
    return torch.sigmoid(x)

def _layernorm(x, axis=-1, eps=1e-05):
    m = x.mean(dim=axis, keepdim=True)
    v = x.var(dim=axis, keepdim=True, unbiased=False)
    return (x - m) / torch.sqrt(v + eps)

def _scatter_add(tgt, idx, src, axis=0):
    return tgt.clone().index_add_(axis, idx, src)

def _segment_sum(src, seg, n):
    out = torch.zeros((n,) + src.shape[1:], dtype=src.dtype)
    return out.index_add_(0, seg, src)

def _pad(x, pw):
    flat = tuple((v for pair in reversed(pw) for v in pair))
    return torch.nn.functional.pad(x, flat)
kernel_name = 'adaLN_cond__ssm_conv_h3__mixer_s_mlp__prompt'

def setup_inputs():

    _w = lambda a: (lambda t: t.to(torch.bfloat16) if t.is_floating_point() else t)(torch.as_tensor(a))

    def _A_setup():
        B, S, D = (1, 2048, 576)
        ks = 4
        return {'q': _w((lambda *s: torch.randn(*s, dtype=torch.bfloat16) * 0.05)(B, S, D)), 'k': _w((lambda *s: torch.randn(*s, dtype=torch.bfloat16) * 0.8)(B, S, D)), 'v': _w((lambda *s: torch.randn(*s, dtype=torch.bfloat16) * 0.8)(B, S, D)), 'shift_k': _w((lambda *s: torch.randn(*s, dtype=torch.bfloat16) * 0.8)(D, ks) * 0.5), 'ssm_k': _w((lambda *s: torch.randn(*s, dtype=torch.bfloat16) * 0.8)(D, S) * (1.0 / S ** 0.5)), 'ssm_D': _w((lambda *s: torch.randn(*s, dtype=torch.bfloat16) * 0.8)(D))}
    _A_in = _A_setup()

    def _B_setup():
        B, S, D, F = (1, 2048, 576, 4608)
        return {'x': _w((lambda *s: torch.randn(*s, dtype=torch.bfloat16) * 0.05)(B, S, D)), 'w1': _w((lambda *s: torch.randn(*s, dtype=torch.bfloat16) * 3.2)(D, D) * D ** (-0.5)), 'w2': _w((lambda *s: torch.randn(*s, dtype=torch.bfloat16) * 3.2)(D, D) * D ** (-0.5)), 'w3': _w((lambda *s: torch.randn(*s, dtype=torch.bfloat16) * 3.2)(D, F) * D ** (-0.5)), 'w4': _w((lambda *s: torch.randn(*s, dtype=torch.bfloat16) * 1.6)(F, D) * F ** (-0.5))}
    _B_in = _B_setup()
    return {'A_q': _A_in['q'], 'A_k': _A_in['k'], 'A_v': _A_in['v'], 'A_shift_k': _A_in['shift_k'], 'A_ssm_k': _A_in['ssm_k'], 'A_ssm_D': _A_in['ssm_D'], 'B_x': _B_in['x'], 'B_w1': _B_in['w1'], 'B_w2': _B_in['w2'], 'B_w3': _B_in['w3'], 'B_w4': _B_in['w4'], 'c': _w((lambda *s: torch.randn(*s, dtype=torch.bfloat16) * 0.1)(1, 576) * 8.0), 'w_mod': _w((lambda *s: torch.randn(*s, dtype=torch.bfloat16) * 0.1)(576, 6 * 576) * 576 ** (-0.5) * 8.0)}

def reference(A_q, A_k, A_v, A_shift_k, A_ssm_k, A_ssm_D, B_x, B_w1, B_w2, B_w3, B_w4, c, w_mod):

    def _A_ref(q, k, v, shift_k, ssm_k, ssm_D):
        B, S, D = q.shape
        ks = shift_k.shape[-1]
        k_pad = _pad(k, ((0, 0), (ks - 1, 0), (0, 0)))
        k_shift = torch.zeros_like(k)
        for t in range(ks):
            k_shift = k_shift + k_pad[:, t:t + S, :] * shift_k[:, ks - 1 - t][None, None, :]
        kv = k_shift * v
        L = 2 * S
        kv_pad = _pad(kv, ((0, 0), (0, S), (0, 0)))
        kf_pad = _pad(ssm_k, ((0, 0), (0, S)))
        kv_f = (lambda x, axes=(-2, -1): torch.fft.rfft2(x.float(), dim=axes))(kv_pad[:, None, :, :], axes=(1, 2))
        kf_f = (lambda x, axes=(-2, -1): torch.fft.rfft2(x.float(), dim=axes))(kf_pad[:, None, :], axes=(1, 2))
        kf_f = (lambda x, *d: x.permute(*d))(kf_f, 1, 2, 0)
        y_f = kv_f * kf_f[None, :, :, :]
        y = (lambda x, s, axes=(-2, -1): torch.fft.irfft2(x, s=s, dim=axes).to(torch.bfloat16))(y_f, (1, L), axes=(1, 2))[:, 0, :S, :]
        y = y + kv * ssm_D[None, None, :]
        return q * y

    def _B_ref(x, w1, w2, w3, w4):
        B, S, D = x.shape
        h = _gelu(_layernorm(x, axis=-1) @ w1)
        c = D // 4
        g0 = _pad(h[:, :, 0 * c:1 * c], ((0, 0), (1, 0), (0, 0)))[:, :S, :]
        g1 = _pad(h[:, :, 1 * c:2 * c], ((0, 0), (0, 1), (0, 0)))[:, 1:, :]
        g2 = _pad(h[:, :, 2 * c:3 * c], ((0, 0), (2, 0), (0, 0)))[:, :S, :]
        g3 = _pad(h[:, :, 3 * c:], ((0, 0), (0, 2), (0, 0)))[:, 2:, :]
        hs = torch.concatenate([g0, g1, g2, g3], axis=-1) @ w2
        x1 = x + hs
        h2 = _gelu(_layernorm(x1, axis=-1) @ w3) @ w4
        return x1 + h2
    x = A_q
    mod = (_silu(c) @ w_mod).reshape(c.shape[0], 6, 1, -1)
    sa, ca, ga, sb, cb, gb = (mod[:, 0].clone(), mod[:, 1].clone(), mod[:, 2].clone(), mod[:, 3].clone(), mod[:, 4].clone(), mod[:, 5].clone())
    h = _layernorm(x, axis=-1) * (1 + ca) + sa
    x = x + ga * _A_ref(h, A_k, A_v, A_shift_k, A_ssm_k, A_ssm_D)
    h = _layernorm(x, axis=-1) * (1 + cb) + sb
    x = x + gb * _B_ref(h, B_w1, B_w2, B_w3, B_w4)
    return x
```

```python
class Asm:
    def __init__(self):
        self.lines = []
        self.nlabel = 0
    def __call__(self, s=''):
        self.lines.append('    ' + s if s and not s.endswith(':') else s)
    def raw(self, s):
        self.lines.append(s)
    def label(self, name):
        self.lines.append(name + ':')
    def newlabel(self, base='L'):
        self.nlabel += 1
        return f'{base}_{self.nlabel}'
    def text(self):
        return '\n'.join(self.lines) + '\n'

def vr(lo, n=1):
    return f'v{lo}' if n == 1 else f'v[{lo}:{lo+n-1}]'
def ar(lo, n=1):
    return f'a{lo}' if n == 1 else f'a[{lo}:{lo+n-1}]'
def sr(lo, n=1):
    return f's{lo}' if n == 1 else f's[{lo}:{lo+n-1}]'

def kernel_begin(A, name):
    A.raw('.text')
    A.raw(f'.globl {name}')
    A.raw('.p2align 8')
    A.raw(f'.type {name},@function')
    A.raw(f'{name}:')

def kernel_desc(name, vgpr, sgpr=102, accum=None, ygrid=False):
    if accum is None:
        accum = (vgpr + 3) // 4 * 4
    s = ['.section .rodata,"a"', '.p2align 6', f'.amdhsa_kernel {name}',
         f'  .amdhsa_next_free_vgpr {vgpr}', f'  .amdhsa_next_free_sgpr {sgpr}',
         f'  .amdhsa_accum_offset {accum}', '  .amdhsa_group_segment_fixed_size 0',
         '  .amdhsa_kernarg_size 128', '  .amdhsa_user_sgpr_count 2',
         '  .amdhsa_user_sgpr_kernarg_segment_ptr 1', '  .amdhsa_system_sgpr_workgroup_id_x 1']
    if ygrid: s.append('  .amdhsa_system_sgpr_workgroup_id_y 1')
    s += ['  .amdhsa_float_denorm_mode_32 3', '  .amdhsa_float_denorm_mode_16_64 3', '.end_amdhsa_kernel']
    return '\n'.join(s) + '\n'
```

```python
from asmlib import *
import sys
S,D,F = 2048,576,4608
HDR = open('adaLN_cond__ssm_conv_h3__mixer_s_mlp__prompt.s.ref').read().split('; Override')[0]
MOD=0; KV=1<<20; Y=KV+S*D*4; X1=Y+S*D*4; H2=X1+S*D*4; XN=H2+S*D*4; G=XN+S*D*4; X2=G+S*D*4; HH=X2+S*D*4
LOG2E=1.4426950408889634
import struct
def fbits(x): return '0x%08x' % struct.unpack('<I', struct.pack('<f', x))[0]

def ldptr(A, sreg, slot): A(f's_load_dwordx2 s[{sreg}:{sreg+1}], s[0:1], {slot*8}')
def addws(A, sreg, off):
    A(f's_add_u32 s{sreg}, s{sreg}, {off}'); A(f's_addc_u32 s{sreg+1}, s{sreg+1}, 0')
def ldbf(A, v, voff, sbase, off=0):
    A(f'global_load_ushort v{v}, v{voff}, s[{sbase}:{sbase+1}] offset:{off}')
def gtid(A, limit, endl):
    A('s_lshl_b32 s3, s2, 8'); A('v_add_u32 v1, s3, v0')
    A(f'v_cmp_gt_u32 vcc, {limit}, v1') if limit<=64 else (A(f's_mov_b32 s4, {limit}'), A('v_cmp_gt_u32 vcc, s4, v1'))
    A('s_and_saveexec_b64 s[60:61], vcc'); A(f's_cbranch_execz {endl}')

ks=[]; A=Asm()
def begin(name): kernel_begin(A,name)
def end(name,l,vg=64):
    A.label(l); A('s_endpgm'); ks.append((name,vg))

begin('mod_kernel'); gtid(A,3456,'E_mod')
ldptr(A,6,11); ldptr(A,8,12); ldptr(A,10,15); A('s_waitcnt lgkmcnt(0)')
A('v_mov_b32 v2, 0'); A('v_lshlrev_b32 v3, 1, v1'); A('v_mov_b32 v4, 0'); A('s_mov_b32 s12, 576')
A.label('L_mod')
ldbf(A,5,4,6); ldbf(A,6,3,8); A('s_waitcnt vmcnt(0)')
A('v_lshlrev_b32 v5, 16, v5'); A('v_lshlrev_b32 v6, 16, v6')
A(f'v_mul_f32 v7, {fbits(-LOG2E)}, v5'); A('v_exp_f32 v7, v7'); A('s_nop 0'); A('v_add_f32 v7, 1.0, v7'); A('v_rcp_f32 v7, v7'); A('s_nop 0'); A('v_mul_f32 v5, v5, v7')
A('v_fmac_f32 v2, v5, v6'); A('v_add_u32 v4, 2, v4'); A('v_add_u32 v3, 6912, v3')
A('s_sub_u32 s12, s12, 1'); A('s_cmp_lg_u32 s12, 0'); A('s_cbranch_scc1 L_mod')
A('v_lshlrev_b32 v3, 2, v1'); A('global_store_dword v3, v2, s[10:11]'); A('s_waitcnt vmcnt(0)')
end('mod_kernel','E_mod')

begin('kv_kernel'); gtid(A,S*D,'E_kv')
ldptr(A,6,1); ldptr(A,8,2); ldptr(A,10,3); ldptr(A,12,15); A('s_waitcnt lgkmcnt(0)'); addws(A,12,KV)
A(f's_mov_b32 s14, {(2**32+575)//576}'); A('v_mul_hi_u32 v2, s14, v1'); A('v_mul_u32_u24 v3, 576, v2'); A('v_sub_u32 v3, v1, v3')
A('v_mov_b32 v10, 0')
for j in range(4):
    A(f'v_lshlrev_b32 v4, 1, v1'); A(f'v_subrev_u32 v4, {j*1152}, v4')
    A(f'v_cmp_le_u32 vcc, {j}, v2'); A('s_nop 1'); A('v_cndmask_b32 v4, 0, v4, vcc')
    ldbf(A,5,4,6); A('v_lshlrev_b32 v6, 3, v3'); ldbf(A,7,6,10,2*j); A('s_waitcnt vmcnt(0)')
    A('v_lshlrev_b32 v5, 16, v5'); A('v_lshlrev_b32 v7, 16, v7'); A('v_cndmask_b32 v5, 0, v5, vcc'); A('v_fmac_f32 v10, v5, v7')
A('v_lshlrev_b32 v4, 1, v1'); ldbf(A,5,4,8); A('s_waitcnt vmcnt(0)'); A('v_lshlrev_b32 v5, 16, v5'); A('v_mul_f32 v10, v10, v5')
A('v_cvt_pk_bf16_f32 v10, v10, v10'); A('v_lshlrev_b32 v10, 16, v10')
A('v_lshlrev_b32 v4, 2, v1'); A('global_store_dword v4, v10, s[12:13]'); A('s_waitcnt vmcnt(0)')
end('kv_kernel','E_kv')

begin('conv_kernel'); gtid(A,S*D,'E_conv')
ldptr(A,6,4); ldptr(A,8,5); ldptr(A,12,15); A('s_waitcnt lgkmcnt(0)')
A('s_mov_b32 s16, s12'); A('s_mov_b32 s17, s13'); addws(A,12,KV); addws(A,16,Y)
A(f's_mov_b32 s14, {(2**32+575)//576}'); A('v_mul_hi_u32 v2, s14, v1'); A('v_mul_u32_u24 v3, 576, v2'); A('v_sub_u32 v3, v1, v3')
A('v_mov_b32 v10, 0')
A('v_lshlrev_b32 v4, 2, v3')
A('v_lshlrev_b32 v5, 11, v3'); A('v_add_u32 v5, v5, v2'); A('v_lshlrev_b32 v5, 1, v5')
A('v_add_u32 v6, 1, v2')
A('s_mov_b64 s[20:21], exec')
A.label('L_conv')
A('global_load_dword v7, v4, s[12:13]'); ldbf(A,8,5,6); A('s_waitcnt vmcnt(0)'); A('v_lshlrev_b32 v8, 16, v8'); A('v_fmac_f32 v10, v7, v8')
A('v_add_u32 v4, 2304, v4'); A('v_subrev_u32 v5, 2, v5'); A('v_subrev_u32 v6, 1, v6')
A('v_cmp_lt_u32 vcc, 0, v6'); A('s_and_b64 exec, exec, vcc'); A('s_cbranch_execnz L_conv')
A('s_mov_b64 exec, s[20:21]')
A('v_lshlrev_b32 v4, 2, v1'); A('global_load_dword v7, v4, s[12:13]'); A('v_lshlrev_b32 v5, 1, v3'); ldbf(A,8,5,8); A('s_waitcnt vmcnt(0)')
A('v_lshlrev_b32 v8, 16, v8'); A('v_fmac_f32 v10, v7, v8')
A('global_store_dword v4, v10, s[16:17]'); A('s_waitcnt vmcnt(0)')
end('conv_kernel','E_conv')

def wave_sum(v, t):
    for off in (0x041F,0x081F,0x101F,0x201F,0x401F):
        A(f'ds_swizzle_b32 v{t}, v{v} offset:{off}'); A('s_waitcnt lgkmcnt(0)'); A(f'v_add_f32 v{v}, v{v}, v{t}')
    A('s_nop 1'); A(f'v_readlane_b32 s30, v{v}, 0'); A(f'v_readlane_b32 s31, v{v}, 32'); A('s_nop 3')
    A(f'v_mov_b32 v{v}, s30'); A(f'v_add_f32 v{v}, s31, v{v}')
def layernorm(src, dst):
    A(f'v_mov_b32 v40, 0')
    for i in range(9): A(f'v_add_f32 v40, v40, v{src+i}')
    wave_sum(40,41); A(f'v_mul_f32 v40, {fbits(1/576)}, v40')
    A('v_mov_b32 v42, 0')
    for i in range(9):
        A(f'v_sub_f32 v{dst+i}, v{src+i}, v40'); A(f'v_fmac_f32 v42, v{dst+i}, v{dst+i}')
    wave_sum(42,41); A(f'v_mul_f32 v42, {fbits(1/576)}, v42'); A(f'v_add_f32 v42, {fbits(1e-5)}, v42'); A('v_rsq_f32 v42, v42'); A('s_nop 0')
    for i in range(9): A(f'v_mul_f32 v{dst+i}, v{dst+i}, v42')

begin('rowa_kernel')
A('s_cmp_ge_u32 s2, 2048'); A('s_cbranch_scc1 E_rowa')
ldptr(A,6,0); ldptr(A,12,15); A('s_waitcnt lgkmcnt(0)')
for (r,off) in ((14,Y),(16,X1),(18,H2),(20,XN)):
    A(f's_mov_b32 s{r}, s12'); A(f's_mov_b32 s{r+1}, s13'); addws(A,r,off)
A('s_mul_i32 s3, s2, 576'); A('v_add_u32 v1, s3, v0')
A('v_lshlrev_b32 v2, 1, v1'); A('v_lshlrev_b32 v3, 2, v1'); A('v_lshlrev_b32 v4, 2, v0')
for i in range(9):
    ldbf(A,10+i,2,6,128*i); A(f'global_load_dword v{20+i}, v3, s[14:15] offset:{256*i}')
A('s_waitcnt vmcnt(0)')
for i in range(9): A(f'v_lshlrev_b32 v{10+i}, 16, v{10+i}')
layernorm(10,30)
def ldmod(idx, dst):
    A(f'v_add_u32 v5, {idx*2304}, v4')
    for i in range(9): A(f'global_load_dword v{dst+i}, v5, s[12:13] offset:{256*i}')
    A('s_waitcnt vmcnt(0)')
ldmod(1,50)
for i in range(9): A(f'v_add_f32 v{50+i}, 1.0, v{50+i}'); A(f'v_mul_f32 v{30+i}, v{30+i}, v{50+i}')
ldmod(0,50)
for i in range(9): A(f'v_add_f32 v{30+i}, v{30+i}, v{50+i}')
ldmod(2,50)
for i in range(9):
    A(f'v_mul_f32 v{30+i}, v{30+i}, v{20+i}'); A(f'v_fmac_f32 v{10+i}, v{30+i}, v{50+i}')
    A(f'global_store_dword v3, v{10+i}, s[16:17] offset:{256*i}')
layernorm(10,30)
ldmod(4,50)
for i in range(9): A(f'v_add_f32 v{50+i}, 1.0, v{50+i}'); A(f'v_mul_f32 v{30+i}, v{30+i}, v{50+i}')
ldmod(3,50)
for i in range(9):
    A(f'v_add_f32 v{30+i}, v{30+i}, v{50+i}'); A(f'global_store_dword v3, v{30+i}, s[18:19] offset:{256*i}')
layernorm(30,20)
for i in range(9): A(f'global_store_dword v3, v{20+i}, s[20:21] offset:{256*i}')
A('s_waitcnt vmcnt(0)')
end('rowa_kernel','E_rowa',vg=64)

begin('rowln_kernel')
A('s_cmp_ge_u32 s2, 2048'); A('s_cbranch_scc1 E_rowln')
ldptr(A,12,15); A('s_waitcnt lgkmcnt(0)')
for (r,off) in ((14,X2),(20,XN)):
    A(f's_mov_b32 s{r}, s12'); A(f's_mov_b32 s{r+1}, s13'); addws(A,r,off)
A('s_mul_i32 s3, s2, 576'); A('v_add_u32 v1, s3, v0'); A('v_lshlrev_b32 v3, 2, v1')
for i in range(9): A(f'global_load_dword v{10+i}, v3, s[14:15] offset:{256*i}')
A('s_waitcnt vmcnt(0)')
layernorm(10,20)
for i in range(9): A(f'global_store_dword v3, v{20+i}, s[20:21] offset:{256*i}')
A('s_waitcnt vmcnt(0)')
end('rowln_kernel','E_rowln')

def gemm(name, Aoff, K, N, wslot, mode):
    nb = N//64; R=8
    begin(name); e='E_'+name
    A(f's_cmp_ge_u32 s2, {nb*(S//R)}'); A(f's_cbranch_scc1 {e}')
    ldptr(A,6,wslot); ldptr(A,12,15); ldptr(A,22,13); A('s_waitcnt lgkmcnt(0)')
    A(f's_mov_b32 s4, {(2**32+nb-1)//nb}'); A('s_mul_hi_u32 s24, s2, s4'); A(f's_mul_i32 s25, s24, {nb}'); A('s_sub_u32 s25, s2, s25')
    A('s_lshl_b32 s24, s24, 3')
    A('s_lshl_b32 s25, s25, 6'); A('v_add_u32 v1, s25, v0')
    A('v_lshlrev_b32 v2, 1, v1')
    A(f's_add_u32 s28, s12, {Aoff}'); A('s_addc_u32 s29, s13, 0'); A(f's_mov_b32 s30, {S*K*4}'); A('s_mov_b32 s31, 0x20000')
    for r in range(R): A(f'v_mov_b32 v{10+r}, 0')
    segs = [(0,K,0)] if mode!='shift' else [(0,144,-1),(144,288,1),(288,432,-2),(432,576,2)]
    for (k0,k1,sh) in segs:
        A(f's_add_i32 s26, s24, {sh}') ; A(f's_mul_i32 s26, s26, {K*4}'); A(f's_add_i32 s26, s26, {k0*4}'); A('v_mov_b32 v3, s26')
        A(f's_mov_b32 s27, {k1-k0}')
        lab=f'L_{name}_{k0}'
        A.label(lab)
        ldbf(A,4,2,6)
        for r in range(R):
            A(f'v_add_u32 v{30+r}, {r*K*4}, v3')
            A(f'buffer_load_dword v{20+r}, v{30+r}, s[28:31], 0 offen')
        A('s_waitcnt vmcnt(0)'); A('v_lshlrev_b32 v4, 16, v4')
        for r in range(R): A(f'v_fmac_f32 v{10+r}, v{20+r}, v4')
        A('v_add_u32 v3, 4, v3'); A(f'v_add_u32 v2, {N*2}, v2')
        A('s_sub_u32 s27, s27, 1'); A('s_cmp_lg_u32 s27, 0'); A(f's_cbranch_scc1 {lab}')
    A(f's_mul_i32 s26, s24, {N}'); A('v_add_u32 v5, s26, v1')
    if mode in ('gelu',):
        c1=-2*LOG2E*0.7978845608028654; c2=c1*0.044715
        A(f's_mov_b32 s40, {fbits(c1)}'); A(f's_mov_b32 s41, {fbits(c2)}'); A('v_mov_b32 v7, s40')
        for r in range(R):
            x=10+r
            A(f'v_mul_f32 v6, v{x}, v{x}'); A('v_fma_f32 v6, v6, s41, v7'); A(f'v_mul_f32 v6, v6, v{x}'); A('v_exp_f32 v6, v6'); A('s_nop 0'); A('v_add_f32 v6, 1.0, v6'); A('v_rcp_f32 v6, v6'); A('s_nop 0'); A(f'v_mul_f32 v{x}, v{x}, v6')
    return e
def store_f32(off, N, R=8):
    A(f's_add_u32 s44, s12, {off}'); A('s_addc_u32 s45, s13, 0'); A('v_lshlrev_b32 v6, 2, v5')
    for r in range(R):
        A(f'global_store_dword v6, v{10+r}, s[44:45]'); A(f'v_add_u32 v6, {N*4}, v6')
    A('s_waitcnt vmcnt(0)')
def add_resid(off,N,R=8,base=50):
    A(f's_add_u32 s44, s12, {off}'); A('s_addc_u32 s45, s13, 0'); A('v_lshlrev_b32 v6, 2, v5')
    for r in range(R):
        A(f'global_load_dword v{base+r}, v6, s[44:45]'); A(f'v_add_u32 v6, {N*4}, v6')
    A('s_waitcnt vmcnt(0)')

e=gemm('g1_kernel',XN,576,576,7,'gelu'); store_f32(G,576); end('g1_kernel',e)
e=gemm('g2_kernel',G,576,576,8,'shift'); add_resid(H2,576)
for r in range(8): A(f'v_add_f32 v{10+r}, v{10+r}, v{50+r}')
store_f32(X2,576); end('g2_kernel',e)
e=gemm('g3_kernel',XN,576,4608,9,'gelu'); store_f32(HH,4608); end('g3_kernel',e)
e=gemm('g4_kernel',HH,4608,576,10,'none'); add_resid(X2,576,base=50)
for r in range(8): A(f'v_add_f32 v{10+r}, v{10+r}, v{50+r}')
add_resid(X1,576,base=50)
A('v_lshlrev_b32 v6, 2, v1'); A(f'v_add_u32 v6, {5*2304}, v6'); A('global_load_dword v7, v6, s[12:13]'); A('s_waitcnt vmcnt(0)')
A('v_lshlrev_b32 v6, 1, v5')
for r in range(8):
    A(f'v_fma_f32 v{10+r}, v{10+r}, v7, v{50+r}'); A(f'v_cvt_pk_bf16_f32 v{10+r}, v{10+r}, v{10+r}')
    A(f'global_store_short v6, v{10+r}, s[22:23]'); A(f'v_add_u32 v6, 1152, v6')
A('s_waitcnt vmcnt(0)')
end('g4_kernel',e)

ntriv = int(sys.argv[1]) if len(sys.argv)>1 else 0
for i in range(ntriv):
    begin(f't{i}_kernel'); A('s_endpgm'); ks.append((f't{i}_kernel',8))

L=[]
L.append(('mod_kernel',14,256)); L.append(('kv_kernel',4608,256)); L.append(('conv_kernel',4608,256)); L.append(('rowa_kernel',2048,64))
L.append(('g1_kernel',9*256,64)); L.append(('g2_kernel',9*256,64)); L.append(('rowln_kernel',2048,64)); L.append(('g3_kernel',72*256,64)); L.append(('g4_kernel',9*256,64))
for i in range(ntriv): L.append((f't{i}_kernel',256,256))
hdr = HDR + ''.join(f'; @launch kernel={n} grid=({g},1,1) block=({b},1,1) lds=0\n' for n,g,b in L) + '.amdgcn_target "amdgcn-amd-amdhsa--gfx950"\n'
t = hdr + A.text() + ''.join(kernel_desc(n,vg,64) for n,vg in ks)
open(sys.argv[2] if len(sys.argv)>2 else 'naive.s','w').write(t)
```

```python
S, D, F = 2048, 576, 4608
def al(x, a=4096): return (x + a - 1)//a*a
MOD   = 0
KVR   = al(MOD + 6*576*4)
KVR_ROW = 2304
Y4    = al(KVR + 576*KVR_ROW*2)
W1P   = al(Y4 + S*D*2)
W2P   = al(W1P + 36*18*1024)
W3P   = al(W2P + 36*18*1024)
W4P   = al(W3P + 8*4*3*18*3*1024)
X1P   = al(W4P + 8*4*3*18*3*1024)
H2P   = al(X1P + S*D*2)
X2P   = al(H2P + S*D*2)
GP    = al(X2P + S*D*2)
GP_PLANE = 2052*16
PART  = al(GP + 72*GP_PLANE)
PART_WG = 4*9*2*1024
STATS = al(PART + 256*PART_WG)
WS_END = STATS + (1<<20)
if __name__ == '__main__':
    for k in 'MOD KVR Y4 W1P W2P W3P W4P X1P H2P X2P GP PART STATS WS_END'.split(): print(k, hex(globals()[k]), globals()[k])
```

```python
import sys, struct
from asmlib import *
import layout as L
S, D, F = L.S, L.D, L.F
LOG2E = 1.4426950408889634
def fb(x): return '0x%08x' % struct.unpack('<I', struct.pack('<f', x))[0]

P = dict(q=16, k=18, v=20, sk=22, ssmk=24, dd=26, bx=28, w1=30, w2=32, w3=34, w4=36, c=38, wmod=40, out=42, dbg=44, ws=46)
def load_ptrs(A):
    A('s_load_dwordx16 s[16:31], s[0:1], 0')
    A('s_load_dwordx16 s[32:47], s[0:1], 64')
def srd(A, s, ptr, off, size):
    p = P[ptr]
    if off:
        A(f's_add_u32 s{s}, s{p}, {off}'); A(f's_addc_u32 s{s+1}, s{p+1}, 0')
    else:
        A(f's_mov_b32 s{s}, s{p}'); A(f's_mov_b32 s{s+1}, s{p+1}')
    A(f's_mov_b32 s{s+2}, {size}'); A(f's_mov_b32 s{s+3}, 0x20000')
def wave_id(A, sdst, vtmp=1):
    A(f'v_lshrrev_b32 v{vtmp}, 6, v0'); A('s_nop 0'); A(f'v_readfirstlane_b32 s{sdst}, v{vtmp}')
def lo16(A, d, s): A(f'v_lshlrev_b32 v{d}, 16, v{s}')
def hi16(A, d, s): A(f'v_and_b32 v{d}, 0xffff0000, v{s}')
def unpack(A, d, s, half):
    (hi16 if half else lo16)(A, d, s)
def divc(A, d, s, c, maxx):
    for sh in range(8, 24):
        m = -(-(1 << sh)//c)
        if m*maxx < (1 << 24)*256 and m < (1<<24) and all((x*m) >> sh == x//c for x in range(maxx+1)) and m*maxx < (1<<32):
            A(f'v_mul_u32_u24 v{d}, {m}, v{s}'); A(f'v_lshrrev_b32 v{d}, {sh}, v{d}'); return
    raise Exception('no magic')
def sdivc(A, d, s, c, maxx):
    for sh in range(8, 31):
        m = -(-(1 << sh)//c)
        if m*maxx < (1<<32) and all((x*m) >> sh == x//c for x in range(maxx+1)):
            A(f's_mul_i32 s{d}, s{s}, {m}'); A(f's_lshr_b32 s{d}, s{d}, {sh}'); return
    raise Exception('no magic')

class Cnt:
    def __init__(self, A, name, maxv):
        self.A, self.name, self.maxv = A, name, maxv
        self.ops = []
        self.done = 0
    def issue(self, text, tag=None):
        self.A(text); self.ops.append(tag)
    def note(self, tag=None):
        self.ops.append(tag)
    def need(self, tags):
        tags = set(tags); last = -1
        for i, t in enumerate(self.ops):
            if t in tags: last = i
        return last
    def wait(self, tags, force=False):
        last = self.need(tags)
        if last < self.done and not force: return
        n = len(self.ops) - 1 - last
        n = min(n, self.maxv)
        self.A(f's_waitcnt {self.name}({n})')
        self.done = max(self.done, len(self.ops) - n)
    def waitall(self):
        self.A(f's_waitcnt {self.name}(0)'); self.done = len(self.ops)

import os
PROF = int(os.environ.get('PROF', '0'))
PROF_BASE = L.STATS
def stamp(A, i):
    if PROF: A(f's_memrealtime s[{80+2*i}:{81+2*i}]')
def stamps_out(A, kidx, swave=3, n=8):
    if not PROF: return
    l = A.newlabel('PRF')
    A('s_waitcnt lgkmcnt(0)')
    A(f's_cmp_lg_u32 s{swave}, 0'); A(f's_cbranch_scc1 {l}')
    A(f's_add_u32 s98, s46, {PROF_BASE + kidx*65536}'); A('s_addc_u32 s99, s47, 0')
    A('s_lshl_b32 s97, s2, 5'); A('v_mov_b32 v0, s97')
    for i in range(n):
        A(f'v_mov_b32 v1, s{80+2*i}'); A(f'global_store_dword v0, v1, s[98:99] offset:{4*i}')
    A.label(l)

def pack_addr(A, mode, vb, s_task):
    ncg = {'w12': 9, 'w3': 72, 'w4': 9}[mode]
    nkp = {'w12': 9, 'w3': 9, 'w4': 72}[mode]
    rowb = {'w12': 1152, 'w3': 9216, 'w4': 1152}[mode]
    lane = vb+10
    st = s_task
    sdivc(A, 60, st, ncg, ncg*nkp); A(f's_mul_i32 s61, s60, {ncg}'); A(f's_sub_u32 s61, s{st}, s61')
    kh, q, o, ks, t0, t1, t2, t3 = vb+2, vb+3, vb+4, vb+5, vb+6, vb+7, vb+8, vb+9
    A(f'v_lshrrev_b32 v{kh}, 5, v{lane}'); A(f'v_bfe_u32 v{q}, v{lane}, 3, 2'); A(f'v_and_b32 v{o}, 7, v{lane}')
    A('s_lshl_b32 s62, s60, 1'); A(f'v_add_u32 v{ks}, s62, v{kh}')
    qsh = 2 if mode == 'w4' else 3
    A(f'v_lshlrev_b32 v{t0}, 5, v{ks}'); A(f'v_lshlrev_b32 v{t1}, {qsh}, v{q}'); A(f'v_add_u32 v{t0}, v{t0}, v{t1}')
    A(f'v_mul_u32_u24 v{t0}, {rowb}, v{t0}')
    A('s_lshl_b32 s62, s61, 7'); A(f'v_lshlrev_b32 v{t1}, 4, v{o}'); A(f'v_add3_u32 v{vb}, v{t0}, v{t1}, s62')
    A('s_lshl_b32 s62, s61, 2'); A(f'v_lshrrev_b32 v{t0}, 1, v{o}'); A(f'v_add_u32 v{t0}, s62, v{t0}')
    if mode == 'w12':
        A(f'v_mul_u32_u24 v{t1}, 18, v{t0}'); A(f'v_add_u32 v{t1}, v{t1}, v{ks}')
    elif mode == 'w3':
        divc(A, t1, t0, 36, 287)
        A(f'v_mul_u32_u24 v{t2}, 36, v{t1}'); A(f'v_sub_u32 v{t0}, v{t0}, v{t2}')
        divc(A, t2, t0, 12, 35)
        A(f'v_mul_u32_u24 v{t3}, 12, v{t2}'); A(f'v_sub_u32 v{t0}, v{t0}, v{t3}')
        divc(A, t3, t0, 3, 11)
        A(f'v_lshlrev_b32 v{t1}, 2, v{t1}'); A(f'v_add_u32 v{t1}, v{t1}, v{t3}')
        A(f'v_mul_u32_u24 v{t3}, 3, v{t3}'); A(f'v_sub_u32 v{t0}, v{t0}, v{t3}')
        A(f'v_mul_u32_u24 v{t1}, 3, v{t1}'); A(f'v_add_u32 v{t1}, v{t1}, v{t2}')
        A(f'v_mul_u32_u24 v{t1}, 18, v{t1}'); A(f'v_add_u32 v{t1}, v{t1}, v{ks}')
        A(f'v_mul_u32_u24 v{t1}, 3, v{t1}'); A(f'v_add_u32 v{t1}, v{t1}, v{t0}')
    else:
        divc(A, t1, ks, 18, 143)
        A(f'v_mul_u32_u24 v{t2}, 18, v{t1}'); A(f'v_sub_u32 v{ks}, v{ks}, v{t2}')
        divc(A, t2, t0, 9, 35)
        A(f'v_mul_u32_u24 v{t3}, 9, v{t2}'); A(f'v_sub_u32 v{t0}, v{t0}, v{t3}')
        A(f'v_lshlrev_b32 v{t1}, 2, v{t1}'); A(f'v_add_u32 v{t1}, v{t1}, v{t2}')
        divc(A, t2, t0, 3, 8)
        A(f'v_mul_u32_u24 v{t3}, 3, v{t2}'); A(f'v_sub_u32 v{t0}, v{t0}, v{t3}')
        A(f'v_mul_u32_u24 v{t1}, 3, v{t1}'); A(f'v_add_u32 v{t1}, v{t1}, v{t2}')
        A(f'v_mul_u32_u24 v{t1}, 18, v{t1}'); A(f'v_add_u32 v{t1}, v{t1}, v{ks}')
        A(f'v_mul_u32_u24 v{t1}, 3, v{t1}'); A(f'v_add_u32 v{t1}, v{t1}, v{t0}')
    A(f'v_lshlrev_b32 v{t1}, 10, v{t1}'); A(f'v_and_b32 v{t0}, 1, v{o}'); A(f'v_lshlrev_b32 v{t0}, 7, v{t0}')
    A(f'v_lshlrev_b32 v{t2}, 8, v{q}'); A(f'v_add3_u32 v{vb+1}, v{t1}, v{t0}, v{t2}')
def pack_loads(A, mode, vb, vr0, ssrc):
    rowb = {'w12': 1152, 'w3': 9216, 'w4': 1152}[mode]
    rows = [0,1,2,3,16,17,18,19] if mode == 'w4' else list(range(8))
    t = vb+2
    for jj in range(8):
        off = rows[jj]*rowb
        if off <= 4095:
            A(f'buffer_load_dwordx4 {vr(vr0+4*jj,4)}, v{vb}, s[{ssrc}:{ssrc+3}], 0 offen offset:{off}')
        else:
            A(f'v_add_u32 v{t}, {off}, v{vb}')
            A(f'buffer_load_dwordx4 {vr(vr0+4*jj,4)}, v{t}, s[{ssrc}:{ssrc+3}], 0 offen')
def pack_store(A, vb, vr0, vo, sdst):
    for e in range(8):
        d = e >> 1; sel = 's65' if e & 1 else 's64'
        o = vo + 4*(e & 1)
        for h in range(4):
            A(f'v_perm_b32 v{o+h}, v{vr0+4*(2*h+1)+d}, v{vr0+4*(2*h)+d}, {sel}')
        A(f'buffer_store_dwordx4 {vr(o,4)}, v{vb+1}, s[{sdst}:{sdst+3}], 0 offen offset:{16*e}')
        if e & 1: A('s_nop 1')
def pack_consts(A):
    A('s_mov_b32 s64, 0x05040100'); A('s_mov_b32 s65, 0x07060302')

K1_KV, K1_MOD, K1_PK = 144, 108, 41
def k1(A):
    name = 'k1_kernel'; kernel_begin(A, name)
    n = K1_KV + K1_MOD + K1_PK
    A(f's_cmp_ge_u32 s2, {n}'); A('s_cbranch_scc1 K1_END')
    stamp(A, 0)
    load_ptrs(A); wave_id(A, 3)
    A('v_and_b32 v1, 63, v0')
    A('s_waitcnt lgkmcnt(0)')
    stamp(A, 1)
    A(f's_cmp_ge_u32 s2, {K1_KV}'); A('s_cbranch_scc1 K1_NOTKV')
    srd(A, 48, 'k', 0, S*D*2); srd(A, 52, 'v', 0, S*D*2); srd(A, 56, 'sk', 0, D*4*2); srd(A, 60, 'ws', L.KVR, 576*L.KVR_ROW*2)
    sdivc(A, 4, 2, 9, 143); A('s_mul_i32 s5, s4, 9'); A('s_sub_u32 s5, s2, s5')
    A('v_lshrrev_b32 v2, 3, v1'); A('v_and_b32 v3, 7, v1')
    A('s_lshl_b32 s6, s4, 7'); A('s_lshl_b32 s7, s3, 5'); A('s_add_u32 s6, s6, s7')
    A('v_lshlrev_b32 v2, 2, v2'); A('v_add_u32 v2, s6, v2')
    A('s_lshl_b32 s7, s5, 6'); A('v_lshlrev_b32 v3, 3, v3'); A('v_add_u32 v3, s7, v3')
    A('v_mul_u32_u24 v4, 1152, v2'); A('v_lshlrev_b32 v5, 1, v3'); A('v_add_u32 v4, v4, v5')
    KR, VR, SKR = 16, 44, 60
    for i in range(7):
        A(f'v_add_u32 v{8+i}, {(i-3)*1152}, v4') if i != 3 else A('v_mov_b32 v11, v4')
    for i in range(7): A(f'buffer_load_dwordx4 {vr(KR+4*i,4)}, v{8+i}, s[48:51], 0 offen')
    for r in range(4): A(f'buffer_load_dwordx4 {vr(VR+4*r,4)}, v{11+r}, s[52:55], 0 offen')
    A('v_lshlrev_b32 v6, 3, v3')
    for i in range(4): A(f'buffer_load_dwordx4 {vr(SKR+4*i,4)}, v6, s[56:59], 0 offen offset:{16*i}')
    A(f'v_mul_u32_u24 v7, {L.KVR_ROW*2}, v3'); A('v_lshlrev_b32 v5, 1, v2'); A('v_sub_u32 v7, v7, v5'); A('v_add_u32 v7, 4088, v7')
    A('s_cmp_lg_u32 s4, 0'); A('s_cbranch_scc1 K1_NOPAD')
    for i in range(4): A(f'v_mov_b32 v{80+i}, 0')
    A('v_lshrrev_b32 v84, 2, v0'); A('v_add_u32 v84, s7, v84'); A(f'v_mul_u32_u24 v84, {L.KVR_ROW*2}, v84')
    A('v_and_b32 v85, 3, v0'); A('v_lshlrev_b32 v85, 7, v85'); A('v_add3_u32 v84, v84, v85, 64'); A('v_add_u32 v84, 4032, v84')
    for i in range(8): A(f'buffer_store_dwordx4 v[80:83], v84, s[60:63], 0 offen offset:{16*i}')
    A('s_cmp_lg_u32 s2, 0'); A('s_cbranch_scc1 K1_NOPAD')
    srd(A, 68, 'ws', L.GP, 72*L.GP_PLANE)
    A('v_lshrrev_b32 v84, 1, v0'); A(f'v_mul_u32_u24 v84, {L.GP_PLANE}, v84'); A('v_and_b32 v85, 1, v0'); A(f'v_mul_u32_u24 v85, {2050*16}, v85'); A('v_add_u32 v84, v84, v85')
    for i in range(2): A(f'buffer_store_dwordx4 v[80:83], v84, s[68:71], 0 offen offset:{16*i}')
    A.label('K1_NOPAD')
    A('s_waitcnt vmcnt(0)')
    stamp(A, 2)
    T = 80
    for e in range(8):
        d, h = e >> 1, e & 1
        for i in range(7): unpack(A, T+i, KR+4*i+d, h)
        for r in range(4): unpack(A, T+8+r, VR+4*r+d, h)
        lo16(A, T+12, SKR+2*e); hi16(A, T+13, SKR+2*e); lo16(A, T+14, SKR+2*e+1); hi16(A, T+15, SKR+2*e+1)
        for r in range(4):
            A(f'v_mul_f32 v{T+16+r}, v{T+3+r}, v{T+12}')
        for j in range(1, 4):
            for r in range(4): A(f'v_fmac_f32 v{T+16+r}, v{T+3+r-j}, v{T+12+j}')
        for r in range(4): A(f'v_mul_f32 v{T+16+r}, v{T+16+r}, v{T+8+r}')
        o = T+20+2*(e & 1)
        A(f'v_cvt_pk_bf16_f32 v{o}, v{T+19}, v{T+18}'); A(f'v_cvt_pk_bf16_f32 v{o+1}, v{T+17}, v{T+16}')
        A(f'buffer_store_dwordx2 {vr(o,2)}, v7, s[60:63], 0 offen')
        if e < 7: A(f'v_add_u32 v7, {L.KVR_ROW*2}, v7')
    stamp(A, 3); A('s_waitcnt vmcnt(0)') if PROF else None; stamp(A, 4); stamps_out(A, 0)
    A('s_endpgm')
    A.label('K1_NOTKV')
    A(f's_cmp_ge_u32 s2, {K1_KV+K1_MOD}'); A('s_cbranch_scc1 K1_PACK')
    srd(A, 48, 'wmod', 0, 576*3456*2); srd(A, 52, 'c', 0, 576*2); srd(A, 56, 'ws', L.MOD, 3456*4)
    A(f's_sub_u32 s4, s2, {K1_KV}')
    A('v_lshrrev_b32 v2, 2, v1'); A('s_mul_i32 s5, s3, 144'); A('v_add_u32 v2, s5, v2')
    A('v_and_b32 v3, 3, v1'); A('v_lshlrev_b32 v3, 4, v3'); A('s_lshl_b32 s6, s4, 6'); A('v_add_u32 v3, s6, v3')
    A('v_mul_u32_u24 v4, 6912, v2'); A('v_add_u32 v4, v4, v3')
    A('v_lshlrev_b32 v5, 1, v2')
    for i in range(9):
        A(f'buffer_load_dwordx4 {vr(16+4*i,4)}, v4, s[48:51], 0 offen')
        if i < 8: A(f'v_add_u32 v4, {16*6912}, v4')
        A(f'buffer_load_ushort v{56+i}, v5, s[52:55], 0 offen offset:{32*i}')
    for e in range(8): A(f'v_mov_b32 v{70+e}, 0')
    A('s_waitcnt vmcnt(0)')
    stamp(A, 2)
    for i in range(9):
        c = 56+i
        lo16(A, c, c); A(f'v_mul_f32 v66, {fb(-LOG2E)}, v{c}'); A('v_exp_f32 v66, v66'); A('s_nop 0'); A('v_add_f32 v66, 1.0, v66'); A('v_rcp_f32 v66, v66'); A('s_nop 0'); A(f'v_mul_f32 v{c}, v{c}, v66')
        for e in range(8):
            unpack(A, 67, 16+4*i+(e >> 1), e & 1); A(f'v_fmac_f32 v{70+e}, v67, v{c}')
    for sh in (4, 8):
        A('s_nop 1')
        for e in range(8): A(f'v_add_f32_dpp v{70+e}, v{70+e}, v{70+e} row_ror:{sh} row_mask:0xf bank_mask:0xf')
    A('v_lshrrev_b32 v2, 4, v1'); A('s_lshl_b32 s5, s3, 2'); A('v_add_u32 v2, s5, v2'); A('v_lshlrev_b32 v2, 7, v2')
    A('v_and_b32 v3, 3, v1'); A('v_lshlrev_b32 v3, 5, v3'); A('v_add_u32 v2, v2, v3')
    A('v_and_b32 v3, 12, v1'); A('v_cmp_eq_u32 vcc, 0, v3'); A('s_and_saveexec_b64 s[8:9], vcc')
    A('ds_write_b128 v2, v[70:73]'); A('ds_write_b128 v2, v[74:77] offset:16')
    A('s_mov_b64 exec, s[8:9]')
    A('s_waitcnt lgkmcnt(0)'); A('s_barrier')
    A('v_cmp_gt_u32 vcc, 32, v0'); A('s_and_saveexec_b64 s[8:9], vcc'); A('s_cbranch_execz K1_END')
    A('v_lshlrev_b32 v2, 2, v0')
    for i in range(16): A(f'ds_read_b32 v{16+i}, v2 offset:{128*i}')
    A('s_waitcnt lgkmcnt(0)')
    for i in range(1, 16): A(f'v_add_f32 v16, v16, v{16+i}')
    A('s_lshl_b32 s6, s4, 7'); A('v_add_u32 v2, s6, v2')
    A('buffer_store_dword v16, v2, s[56:59], 0 offen')
    stamp(A, 3); A('s_waitcnt vmcnt(0)') if PROF else None; stamp(A, 4); stamps_out(A, 0)
    A('s_endpgm')
    A.label('K1_PACK')
    A(f's_sub_u32 s4, s2, {K1_KV+K1_MOD}'); A('s_lshl_b32 s4, s4, 2'); A('s_add_u32 s4, s4, s3')
    A('s_cmp_ge_u32 s4, 162'); A('s_cbranch_scc1 K1_END')
    A('s_cmp_ge_u32 s4, 81'); A('s_cbranch_scc1 K1_PW2')
    srd(A, 48, 'w1', 0, 576*576*2); srd(A, 52, 'ws', L.W1P, 36*18*1024); A('s_branch K1_PGO')
    A.label('K1_PW2')
    srd(A, 48, 'w2', 0, 576*576*2); srd(A, 52, 'ws', L.W2P, 36*18*1024); A('s_sub_u32 s4, s4, 81')
    A.label('K1_PGO')
    pack_consts(A); A('v_mov_b32 v14, v1')
    pack_addr(A, 'w12', 4, 4); pack_loads(A, 'w12', 4, 16, 48)
    A('s_waitcnt vmcnt(0)')
    stamp(A, 2)
    pack_store(A, 4, 16, 48, 52)
    stamp(A, 3); A('s_waitcnt vmcnt(0)') if PROF else None; stamp(A, 4); stamps_out(A, 0)
    A.label('K1_END'); A('s_endpgm')
    return (name, n, 256, 2048, 104, None)

K2_CONV, K2_PK = 144, 108
CV_WS = 13120
CV_E, CV_O, CV_KV = 0, 4160, 8320
def k2(A):
    name = 'k2_kernel'; kernel_begin(A, name)
    n = K2_CONV + K2_PK
    A(f's_cmp_ge_u32 s2, {n}'); A('s_cbranch_scc1 K2_END')
    stamp(A, 0)
    load_ptrs(A); wave_id(A, 3)
    A('v_and_b32 v1, 63, v0')
    A('s_waitcnt lgkmcnt(0)')
    stamp(A, 1)
    A(f's_cmp_ge_u32 s2, {K2_CONV}'); A('s_cbranch_scc1 K2_PACK')
    A('s_lshl_b32 s4, s2, 2'); A('s_add_u32 s4, s4, s3')
    srd(A, 48, 'ssmk', 0, 576*2048*2); srd(A, 52, 'ws', L.KVR, 576*L.KVR_ROW*2); srd(A, 56, 'dd', 0, 576*2); srd(A, 60, 'ws', L.Y4, S*D*2)
    A('s_lshl_b32 s5, s4, 12')
    A(f's_mul_i32 s6, s4, {L.KVR_ROW*2}')
    A(f's_mul_i32 s7, s3, {CV_WS}')
    A('v_lshlrev_b32 v2, 4, v1')
    A('v_add_u32 v3, s5, v2'); A('v_add_u32 v4, s6, v2')
    E0, E1, KVv = 16, 32, 48
    for i in range(4): A(f'buffer_load_dwordx4 {vr(E0+4*i,4)}, v3, s[48:51], 0 offen offset:{1024*i}')
    A('v_add_u32 v5, 4, v3')
    for i in range(4): A(f'buffer_load_dwordx4 {vr(E1+4*i,4)}, v5, s[48:51], 0 offen offset:{1024*i}')
    for i in range(4): A(f'buffer_load_dwordx4 {vr(KVv+4*i,4)}, v4, s[52:55], 0 offen offset:{1024*i}')
    A('v_add_u32 v5, 4096, v4')
    A(f'buffer_load_dwordx4 {vr(KVv+16,4)}, v5, s[52:55], 0 offen')
    A('s_lshl_b32 s8, s4, 1'); A('v_mov_b32 v6, s8'); A('buffer_load_ushort v7, v6, s[56:59], 0 offen')
    A('v_and_b32 v8, 15, v1'); A('v_lshrrev_b32 v9, 4, v1')
    A('v_lshlrev_b32 v10, 5, v8'); A(f'v_sub_u32 v10, {CV_KV+480}, v10'); A('v_lshlrev_b32 v11, 4, v9'); A('v_add3_u32 v10, v10, v11, s7')
    A('v_and_b32 v13, 1, v8'); A('v_cmp_eq_u32 vcc, 1, v13'); A('v_lshlrev_b32 v12, 1, v8')
    A(f'v_mov_b32 v14, {CV_O}'); A(f'v_mov_b32 v15, {CV_E+2}'); A('v_cndmask_b32 v14, v14, v15, vcc')
    A('v_add3_u32 v12, v12, v14, v11'); A('v_add_u32 v12, s7, v12')
    A('v_add_u32 v13, 1024, v12'); A('v_add_u32 v14, 2048, v12'); A('v_add_u32 v15, 3072, v12')
    A('v_add_u32 v2, s7, v2')
    A('s_waitcnt vmcnt(9)')
    for i in range(4): A(f'ds_write_b128 v2, {vr(E0+4*i,4)} offset:{CV_E+32+1024*i}')
    A('s_waitcnt vmcnt(5)')
    for i in range(4):
        for k in range(4): A(f'v_alignbit_b32 v{E1+4*i+k}, v{E1+4*i+k}, v{E0+4*i+k}, 16')
        A(f'ds_write_b128 v2, {vr(E1+4*i,4)} offset:{CV_O+32+1024*i}')
    A(f'v_readlane_b32 s9, v{E0}, 0'); A('s_lshl_b32 s9, s9, 16')
    for k in range(4): A(f'v_mov_b32 v{68+k}, 0')
    A('v_mov_b32 v72, 0'); A('v_mov_b32 v73, 0'); A('v_mov_b32 v74, 0'); A('v_mov_b32 v75, s9')
    A('v_cmp_eq_u32 vcc, 1, v1'); A('s_nop 1'); A('v_cndmask_b32 v75, 0, v75, vcc')
    A('v_cmp_gt_u32 vcc, 2, v1'); A('s_and_saveexec_b64 s[10:11], vcc')
    A(f'ds_write_b128 v2, v[68:71] offset:{CV_E}'); A(f'ds_write_b128 v2, v[72:75] offset:{CV_O}')
    A('s_mov_b64 exec, s[10:11]')
    A('s_waitcnt vmcnt(1)')
    for i in range(4): A(f'ds_write_b128 v2, {vr(KVv+4*i,4)} offset:{CV_KV+1024*i}')
    A('v_cmp_gt_u32 vcc, 32, v1'); A('s_and_saveexec_b64 s[10:11], vcc')
    A(f'ds_write_b128 v2, {vr(KVv+16,4)} offset:{CV_KV+4096}')
    A('s_mov_b64 exec, s[10:11]')
    A('s_waitcnt vmcnt(0)')
    stamp(A, 2)
    A('v_sub_u32 v68, 15, v8'); A('v_lshrrev_b32 v69, 3, v68'); A('v_and_b32 v70, 7, v68')
    A('v_and_b32 v71, 1, v70'); A('v_lshlrev_b32 v71, 4, v71'); A('v_lshlrev_b32 v7, v71, v7')
    A('v_lshrrev_b32 v70, 1, v70'); A('v_lshl_add_u32 v70, v69, 2, v70')
    A('v_lshlrev_b32 v71, 2, v9')
    for k in range(4):
        A(f'v_add_u32 v72, {k}, v71'); A('v_cmp_eq_u32 vcc, v72, v70'); A('s_nop 1'); A(f'v_cndmask_b32 v{76+k}, 0, v7, vcc')
    A('s_waitcnt lgkmcnt(0)')
    ACC = 80
    AR = 112
    NA = 8; DIST = 5
    lg = Cnt(A, 'lgkmcnt', 15)
    def bread(p): lg.issue(f'ds_read_b128 {ar(4*(p+7),4)}, v10 offset:{64*(56-p)}', ('B', p))
    def areads(m):
        k, mm = m >> 4, m & 15; r = AR + 4*(m % NA)
        lg.issue(f'ds_read2_b32 {vr(r,2)}, v{12+k} offset0:{16*mm} offset1:{16*mm+1}', ('A', m))
        lg.issue(f'ds_read2_b32 {vr(r+2,2)}, v{12+k} offset0:{16*mm+2} offset1:{16*mm+3}', ('A', m))
    for n_ in range(8): bread(8*n_)
    areads(0)
    for n_ in range(8): bread(8*n_ - 1)
    areads(1)
    lg.wait([('B', 8*n_) for n_ in range(8)])
    for n_ in range(8): A(f'v_mfma_f32_16x16x32_bf16 {vr(ACC+4*n_,4)}, v[76:79], {ar(4*(8*n_+7),4)}, 0')
    nextA = 2
    for m in range(64):
        lg.wait([('A', m)] + ([('B', 8*n_ - m) for n_ in range(8)] if m < 8 else []))
        fill = []
        if m + 2 < 8: fill += [('B', 8*n_ - (m+2)) for n_ in range(8)]
        while nextA < 64 and nextA <= m + (2 if m < 6 else DIST):
            fill.append(('A', nextA)); nextA += 1
        r = AR + 4*(m % NA)
        ns = list(range(m >> 3, 8))
        for idx, n_ in enumerate(ns):
            p = 8*n_ - m
            A(f'v_mfma_f32_16x16x32_bf16 {vr(ACC+4*n_,4)}, {vr(r,4)}, {ar(4*(p+7),4)}, {vr(ACC+4*n_,4)}')
            lo_, hi_ = idx*len(fill)//len(ns), (idx+1)*len(fill)//len(ns)
            for f in fill[lo_:hi_]:
                bread(f[1]) if f[0] == 'B' else areads(f[1])
    A('s_nop 7'); A('s_nop 1')
    stamp(A, 3)
    A('v_lshlrev_b32 v16, 5, v8'); A('v_lshlrev_b32 v17, 3, v9'); A('v_add3_u32 v16, v16, v17, s7')
    for n_ in range(8):
        A(f'v_cvt_pk_bf16_f32 v{20+2*n_}, v{ACC+4*n_}, v{ACC+4*n_+1}'); A(f'v_cvt_pk_bf16_f32 v{21+2*n_}, v{ACC+4*n_+2}, v{ACC+4*n_+3}')
        A(f'ds_write_b64 v16, {vr(20+2*n_,2)} offset:{512*n_}')
    A('s_waitcnt lgkmcnt(0)'); A('s_barrier')
    A('v_bfe_u32 v16, v1, 2, 2'); A(f'v_mul_u32_u24 v16, {CV_WS}, v16')
    A('v_and_b32 v17, 3, v1'); A('v_lshlrev_b32 v17, 3, v17'); A('v_lshlrev_b32 v18, 5, v9'); A('v_add3_u32 v16, v16, v17, v18')
    A('s_lshl_b32 s8, s3, 10'); A('v_add_u32 v16, s8, v16')
    for i in range(8): A(f'ds_read_b64_tr_b16 {vr(20+2*i,2)}, v16 offset:{128*i}')
    A('s_lshl_b32 s8, s2, 14'); A('s_lshl_b32 s9, s3, 12'); A('s_add_u32 s8, s8, s9'); A('v_lshlrev_b32 v17, 3, v1'); A('v_add_u32 v17, s8, v17')
    for i in range(8):
        A(f's_waitcnt lgkmcnt({7-i})')
        A(f'buffer_store_dwordx2 {vr(20+2*i,2)}, v17, s[60:63], 0 offen offset:{512*i}')
    stamp(A, 4); A('s_waitcnt vmcnt(0)') if PROF else None; stamp(A, 5); stamps_out(A, 1)
    A('s_endpgm')
    A.label('K2_PACK')
    A(f's_sub_u32 s4, s2, {K2_CONV}'); A('s_lshl_b32 s4, s4, 2'); A('s_add_u32 s4, s4, s3'); A('s_mul_i32 s4, s4, 3')
    pack_consts(A)
    A('s_cmp_ge_u32 s4, 648'); A('s_cbranch_scc1 K2_PW4')
    for (mode, ptr, dst, lab) in (('w3', 'w3', L.W3P, None), ('w4', 'w4', L.W4P, 'K2_PW4')):
        if lab:
            A.label(lab); A('s_sub_u32 s4, s4, 648')
        srd(A, 48, ptr, 0, 576*4608*2); srd(A, 52, 'ws', dst, 8*4*3*18*3*1024)
        for t in range(3):
            vb = 4 + 12*t
            A(f'v_mov_b32 v{vb+10}, v1')
            pack_addr(A, mode, vb, 4)
            pack_loads(A, mode, vb, 48 + 32*t, 48)
            if t < 2: A('s_add_u32 s4, s4, 1')
        for t in range(3):
            A(f's_waitcnt vmcnt({8*(2-t) + 0})') if t == 0 else A(f's_waitcnt vmcnt({8*(2-t) + 8*t})')
            if t == 0: stamp(A, 2)
            pack_store(A, 4 + 12*t, 48 + 32*t, 144, 52)
        stamp(A, 4); A('s_waitcnt vmcnt(0)') if PROF else None; stamp(A, 5); stamps_out(A, 1)
        A('s_endpgm')
    A.label('K2_END'); A('s_endpgm')
    return (name, n, 256, 4*CV_WS, 160+256, 160)


GC1 = -2*LOG2E*0.7978845608028654
GC2 = GC1*0.044715
def gelu_consts(A, s1=70, s2=71):
    A(f's_mov_b32 s{s1}, {fb(GC1)}'); A(f's_mov_b32 s{s2}, {fb(GC2)}')
def gelu_ops(x, t, vc1, s2=71):
    return [f'v_mul_f32 v{t}, v{x}, v{x}', f'v_fma_f32 v{t}, v{t}, s{s2}, v{vc1}', f'v_mul_f32 v{t}, v{t}, v{x}',
            f'v_exp_f32 v{t}, v{t}', f'v_add_f32 v{t}, 1.0, v{t}', f'v_rcp_f32 v{t}, v{t}', f'v_mul_f32 v{x}, v{x}, v{t}']
def gelu_group(A, xs, ts, vc1):
    ops = [gelu_ops(x, t, vc1) for x, t in zip(xs, ts)]
    assert len(xs) >= 2
    for k in range(7):
        for o in ops: A(o[k])
def row16_sum(A, regs, t=None):
    for sh in (8, 4, 2, 1):
        if len(regs) < 3: A('s_nop 1')
        for r in regs: A(f'v_add_f32_dpp v{r}, v{r}, v{r} row_ror:{sh} row_mask:0xf bank_mask:0xf')
def ln_finish(A, vs, vss, vr_, vnm, n=576):
    A(f'v_mul_f32 v{vs}, {fb(1.0/n)}, v{vs}')
    A(f'v_mul_f32 v{vss}, {fb(1.0/n)}, v{vss}')
    A(f'v_fma_f32 v{vss}, -v{vs}, v{vs}, v{vss}')
    A(f'v_max_f32 v{vss}, 0, v{vss}')
    A(f'v_add_f32 v{vss}, {fb(1e-5)}, v{vss}')
    A(f'v_rsq_f32 v{vr_}, v{vss}')
    A('s_nop 0')
    A(f'v_mul_f32 v{vnm}, v{vs}, v{vr_}')
    A(f'v_sub_f32 v{vnm}, 0, v{vnm}')

K3_XN, K3_MV = 0, 36864
OWN = [[0,1,2],[3,4],[5,6],[7,8]]
def k3(A):
    name = 'k3_kernel'; kernel_begin(A, name); n = 256
    A(f's_cmp_ge_u32 s2, {n}'); A('s_cbranch_scc1 K3_END')
    stamp(A, 0)
    load_ptrs(A); wave_id(A, 3)
    A('v_and_b32 v1, 63, v0'); A('s_lshr_b32 s4, s2, 6'); A('s_and_b32 s5, s2, 63')
    A('v_and_b32 v2, 15, v1'); A('v_lshrrev_b32 v3, 4, v1')
    A('s_waitcnt lgkmcnt(0)')
    stamp(A, 1)
    srd(A, 48, 'q', 0, S*D*2); srd(A, 52, 'ws', L.Y4, S*D*2); srd(A, 56, 'ws', L.W1P, 36*18*1024); srd(A, 60, 'ws', L.MOD, 3456*4)
    srd(A, 64, 'ws', L.X1P, S*D*2); srd(A, 72, 'ws', L.H2P, S*D*2); srd(A, 76, 'ws', L.GP, 72*L.GP_PLANE)
    X, QP, YP, WF = 16, 52, 70, 88
    vm = Cnt(A, 'vmcnt', 63)
    A('s_cmp_ge_u32 s3, 8'); A('s_cbranch_scc1 K3_W8')
    A('s_lshl_b32 s6, s5, 5'); A('s_lshl_b32 s7, s3, 2'); A('s_add_u32 s6, s6, s7'); A('v_add_u32 v4, s6, v3')
    A('v_mul_u32_u24 v5, 1152, v4'); A('v_lshlrev_b32 v6, 3, v2'); A('v_add_u32 v5, v5, v6')
    for i in range(9): vm.issue(f'buffer_load_dwordx2 {vr(QP+2*i,2)}, v5, s[48:51], 0 offen offset:{128*i}', 'q')
    A('v_lshlrev_b32 v6, 14, v2'); A('v_lshlrev_b32 v7, 3, v4'); A('v_add_u32 v6, v6, v7')
    for i in range(9):
        A(f's_mov_b32 s8, {i*16*16384}'); vm.issue(f'buffer_load_dwordx2 {vr(YP+2*i,2)}, v6, s[52:55], s8 offen', 'y')
    A.label('K3_W8')
    A('s_mul_i32 s8, s4, 9'); A('s_add_u32 s8, s8, s3'); A(f's_mul_i32 s8, s8, {18*1024}'); A('v_lshlrev_b32 v8, 4, v1')
    for ks in range(18):
        if ks % 4 == 0 and ks: A('s_add_u32 s8, s8, 4096')
        A(f'buffer_load_dwordx4 {vr(WF+4*ks,4)}, v8, s[56:59], s8 offen offset:{1024*(ks%4)}')
    A('s_cmp_lg_u32 s3, 8'); A('s_cbranch_scc1 K3_NOMOD')
    A('v_cmp_gt_u32 vcc, 48, v1'); A('s_and_saveexec_b64 s[10:11], vcc')
    A('v_lshlrev_b32 v9, 4, v1')
    for ps in range(3):
        b = 16 + 20*ps
        for k, vec in enumerate((0, 1, 2, 3, 4)):
            A(f'v_add_u32 v10, {vec*2304 + ps*768}, v9'); A(f'buffer_load_dwordx4 {vr(b+4*k,4)}, v10, s[60:63], 0 offen')
    A('s_waitcnt vmcnt(0)')
    for ps in range(3):
        b = 16 + 20*ps
        for e in range(4):
            A(f'v_add_f32 v{b+4+e}, 1.0, v{b+4+e}'); A(f'v_mul_f32 v{b+4+e}, v{b+4+e}, v{b+8+e}')
            A(f'v_mul_f32 v{b+e}, v{b+e}, v{b+8+e}')
            A(f'v_add_f32 v{b+16+e}, 1.0, v{b+16+e}')
        for k, r in enumerate((b+4, b, b+16, b+12)):
            A(f'ds_write_b128 v9, {vr(r,4)} offset:{K3_MV + k*2304 + ps*768}')
    A('s_mov_b64 exec, s[10:11]')
    A('s_waitcnt lgkmcnt(0)')
    A.label('K3_NOMOD')
    A('s_barrier')
    A('s_cmp_ge_u32 s3, 8'); A('s_cbranch_scc1 K3_GEMM')
    T = QP
    A('s_waitcnt vmcnt(27)')
    stamp(A, 2)
    for i in range(9):
        for e in range(4): unpack(A, X+4*i+e, QP+2*i+(e >> 1), e & 1)
    sS, sSS, rr, nm = 10, 11, 12, 13
    def stats():
        A(f'v_add_f32 v{sS}, v{X}, v{X+1}'); A(f'v_mul_f32 v{sSS}, v{X}, v{X}'); A(f'v_fmac_f32 v{sSS}, v{X+1}, v{X+1}')
        for k in range(2, 36):
            A(f'v_add_f32 v{sS}, v{sS}, v{X+k}'); A(f'v_fmac_f32 v{sSS}, v{X+k}, v{X+k}')
        row16_sum(A, [sS, sSS]); ln_finish(A, sS, sSS, rr, nm)
    stats()
    A('v_lshlrev_b32 v14, 4, v2')
    A('s_waitcnt vmcnt(18)')
    def modread(vec, i, dst): A(f'ds_read_b128 {vr(dst,4)}, v14 offset:{K3_MV + vec*2304 + i*256}')
    modread(0, 0, T); modread(1, 0, T+4)
    for i in range(9):
        b = T + 8*(i & 1); nb = T + 8*((i+1) & 1)
        if i < 8:
            modread(0, i+1, nb); modread(1, i+1, nb+4); A('s_waitcnt lgkmcnt(2)')
        else: A('s_waitcnt lgkmcnt(0)')
        for e in range(4):
            x = X+4*i+e
            unpack(A, T+16, YP+2*i+(e >> 1), e & 1)
            A(f'v_fma_f32 v{T+17}, v{x}, v{rr}, v{nm}')
            A(f'v_fma_f32 v{T+17}, v{T+17}, v{b+e}, v{b+4+e}')
            A(f'v_fmac_f32 v{x}, v{T+16}, v{T+17}')
    A('v_lshrrev_b32 v15, 1, v2'); A('v_lshlrev_b32 v15, 15, v15'); A('v_lshlrev_b32 v7, 4, v4'); A('v_add_u32 v15, v15, v7')
    A('v_and_b32 v7, 1, v2'); A('v_lshlrev_b32 v7, 3, v7'); A('v_add_u32 v15, v15, v7')
    def store_own(srdi, tag):
        done = f'K3_ST_{tag}_D'
        for cc in range(4):
            nxt = f'K3_ST_{tag}_{cc+1}'
            if cc < 3:
                A(f's_cmp_lg_u32 s4, {cc}'); A(f's_cbranch_scc1 {nxt}')
            for k, i in enumerate(OWN[cc]):
                o = YP + 2*k
                A(f'v_cvt_pk_bf16_f32 v{o}, v{X+4*i}, v{X+4*i+1}'); A(f'v_cvt_pk_bf16_f32 v{o+1}, v{X+4*i+2}, v{X+4*i+3}')
                A(f's_mov_b32 s8, {i*8*32768}')
                A(f'buffer_store_dwordx2 {vr(o,2)}, v15, s[{srdi}:{srdi+3}], s8 offen')
            if cc < 3:
                A(f's_branch {done}'); A.label(nxt)
        A.label(done)
    store_own(64, 'X1')
    stats()
    modread(2, 0, T); modread(3, 0, T+4)
    for i in range(9):
        b = T + 8*(i & 1); nb = T + 8*((i+1) & 1)
        if i < 8:
            modread(2, i+1, nb); modread(3, i+1, nb+4); A('s_waitcnt lgkmcnt(2)')
        else: A('s_waitcnt lgkmcnt(0)')
        for e in range(4):
            x = X+4*i+e
            A(f'v_fma_f32 v{x}, v{x}, v{rr}, v{nm}')
            A(f'v_fma_f32 v{x}, v{x}, v{b+e}, v{b+4+e}')
    YP_SAVE = YP
    def store_own2(srdi, tag):
        done = f'K3_ST_{tag}_D'
        for cc in range(4):
            nxt = f'K3_ST_{tag}_{cc+1}'
            if cc < 3:
                A(f's_cmp_lg_u32 s4, {cc}'); A(f's_cbranch_scc1 {nxt}')
            for k, i in enumerate(OWN[cc]):
                o = YP + 8 + 2*k
                A(f'v_cvt_pk_bf16_f32 v{o}, v{X+4*i}, v{X+4*i+1}'); A(f'v_cvt_pk_bf16_f32 v{o+1}, v{X+4*i+2}, v{X+4*i+3}')
                A(f's_mov_b32 s8, {i*8*32768}')
                A(f'buffer_store_dwordx2 {vr(o,2)}, v15, s[{srdi}:{srdi+3}], s8 offen')
            if cc < 3:
                A(f's_branch {done}'); A.label(nxt)
        A.label(done)
    store_own2(72, 'H2')
    stats()
    A('s_lshl_b32 s7, s3, 2'); A('v_add_u32 v6, s7, v3')
    A('v_lshrrev_b32 v7, 1, v2')
    A('v_and_b32 v8, 15, v6'); A('v_xor_b32 v8, v8, v7'); A('v_lshlrev_b32 v8, 4, v8')
    A('v_lshrrev_b32 v6, 4, v6'); A('v_lshlrev_b32 v6, 8, v6'); A('v_lshlrev_b32 v7, 9, v7'); A('v_add3_u32 v8, v8, v6, v7')
    A('v_and_b32 v7, 1, v2'); A('v_lshlrev_b32 v7, 3, v7'); A('v_add_u32 v8, v8, v7')
    for i in range(9):
        o = T + 2*(i & 3)
        for e in range(4): A(f'v_fma_f32 v{X+4*i+e}, v{X+4*i+e}, v{rr}, v{nm}')
        A(f'v_cvt_pk_bf16_f32 v{o}, v{X+4*i}, v{X+4*i+1}'); A(f'v_cvt_pk_bf16_f32 v{o+1}, v{X+4*i+2}, v{X+4*i+3}')
        A(f'ds_write_b64 v8, {vr(o,2)} offset:{K3_XN + i*4096}')
    A('s_waitcnt lgkmcnt(0)')
    A.label('K3_GEMM')
    A('s_barrier')
    stamp(A, 3)
    A('v_xor_b32 v6, v2, v3'); A('v_lshlrev_b32 v6, 4, v6'); A('v_lshlrev_b32 v7, 9, v3'); A('v_add_u32 v6, v6, v7'); A('v_xor_b32 v7, 64, v6')
    BF = 16; ACC = 52
    lg = Cnt(A, 'lgkmcnt', 15)
    def bread(ks):
        for rt16 in range(2):
            lg.issue(f'ds_read_b128 {vr(BF + 8*(ks % 4) + 4*rt16, 4)}, v{6 + (ks & 1)} offset:{K3_XN + ks*2048 + rt16*256}', ks)
    bread(0); bread(1); bread(2)
    A('s_waitcnt vmcnt(0)')
    for ks in range(18):
        if ks + 3 < 18: bread(ks+3)
        lg.wait([ks])
        for rt16 in range(2):
            c = '0' if ks == 0 else vr(ACC+4*rt16, 4)
            A(f'v_mfma_f32_16x16x32_bf16 {vr(ACC+4*rt16,4)}, {vr(WF+4*ks,4)}, {vr(BF+8*(ks%4)+4*rt16,4)}, {c}')
    gelu_consts(A); A('v_mov_b32 v9, s70')
    A('s_mul_i32 s8, s4, 9'); A('s_add_u32 s8, s8, s3'); A('s_lshl_b32 s8, s8, 1')
    A('v_lshrrev_b32 v10, 1, v3'); A('v_add_u32 v10, s8, v10'); A(f'v_mul_u32_u24 v10, {L.GP_PLANE}, v10')
    A('s_lshl_b32 s6, s5, 5'); A('v_add_u32 v11, s6, v2'); A('v_lshlrev_b32 v11, 4, v11'); A('v_add3_u32 v10, v10, v11, 32')
    A('v_and_b32 v11, 1, v3'); A('v_lshlrev_b32 v11, 3, v11'); A('v_add_u32 v10, v10, v11')
    A('s_nop 4')
    gelu_group(A, [ACC+k for k in range(8)], [BF+k for k in range(8)], 9)
    for rt16 in range(2):
        o = BF + 8 + 2*rt16
        A(f'v_cvt_pk_bf16_f32 v{o}, v{ACC+4*rt16}, v{ACC+4*rt16+1}'); A(f'v_cvt_pk_bf16_f32 v{o+1}, v{ACC+4*rt16+2}, v{ACC+4*rt16+3}')
        A(f'buffer_store_dwordx2 {vr(o,2)}, v10, s[76:79], 0 offen offset:{256*rt16}')
    stamp(A, 4); A('s_waitcnt vmcnt(0)') if PROF else None; stamp(A, 5); stamps_out(A, 2)
    A.label('K3_END'); A('s_endpgm')
    return (name, n, 576, 36864 + 9216, 160, None)

def k4(A):
    name = 'k4_kernel'; kernel_begin(A, name); n = 256
    A(f's_cmp_ge_u32 s2, {n}'); A('s_cbranch_scc1 K4_END')
    stamp(A, 0)
    load_ptrs(A); wave_id(A, 3)
    A('v_and_b32 v1, 63, v0'); A('s_lshr_b32 s4, s2, 6'); A('s_and_b32 s5, s2, 63')
    A('v_and_b32 v2, 15, v1'); A('v_lshrrev_b32 v3, 4, v1')
    A('s_waitcnt lgkmcnt(0)')
    stamp(A, 1)
    srd(A, 48, 'ws', L.GP, 72*L.GP_PLANE); srd(A, 56, 'ws', L.W2P, 36*18*1024); srd(A, 64, 'ws', L.H2P, S*D*2); srd(A, 72, 'ws', L.X2P, S*D*2)
    WF = 40
    A('s_lshl_b32 s6, s5, 5')
    for kk in range(2):
        A('s_lshl_b32 s7, s3, 3'); A(f's_add_u32 s7, s7, {4*kk}'); A('v_add_u32 v4, s7, v3')
        divc(A, 5, 4, 18, 71)
        A('v_lshrrev_b32 v6, 1, v5'); A('v_add_u32 v6, 1, v6')
        A('v_and_b32 v5, 1, v5'); A('v_cmp_eq_u32 vcc, 1, v5'); A('v_sub_u32 v7, 0, v6'); A('s_nop 0'); A('v_cndmask_b32 v6, v7, v6, vcc')
        A('v_add_u32 v6, v6, v2'); A('v_add_u32 v6, s6, v6'); A('v_add_u32 v6, 2, v6'); A('v_lshlrev_b32 v6, 4, v6')
        A(f'v_mul_u32_u24 v4, {L.GP_PLANE}, v4'); A(f'v_add_u32 v{8+kk}, v4, v6')
    for kk in range(2):
        for rt16 in range(2):
            A('s_lshl_b32 s7, s3, 12'); A(f's_add_u32 m0, s7, {(2*kk+rt16)*1024}'); A('s_nop 0')
            A(f'buffer_load_dwordx4 v{8+kk}, s[48:51], 0 offen offset:{256*rt16} lds') if rt16 == 0 else None
            if rt16 == 1:
                A('s_sub_u32 m0, m0, 256'); A('s_nop 0')
                A(f'buffer_load_dwordx4 v{8+kk}, s[48:51], 0 offen offset:256 lds')
    A('s_mul_i32 s8, s4, 9'); A('s_add_u32 s8, s8, s3'); A(f's_mul_i32 s8, s8, {18*1024}'); A('v_lshlrev_b32 v10, 4, v1')
    for ks in range(18):
        if ks % 4 == 0 and ks: A('s_add_u32 s8, s8, 4096')
        A(f'buffer_load_dwordx4 {vr(WF+4*ks,4)}, v10, s[56:59], s8 offen offset:{1024*(ks%4)}')
    A('s_mul_i32 s8, s4, 9'); A('s_add_u32 s8, s8, s3'); A('s_lshl_b32 s8, s8, 1')
    A('v_lshrrev_b32 v11, 1, v3'); A('v_add_u32 v11, s8, v11'); A('v_lshlrev_b32 v11, 15, v11')
    A('v_add_u32 v12, s6, v2'); A('v_lshlrev_b32 v12, 4, v12'); A('v_add_u32 v11, v11, v12')
    A('v_and_b32 v12, 1, v3'); A('v_lshlrev_b32 v12, 3, v12'); A('v_add_u32 v11, v11, v12')
    for rt16 in range(2): A(f'buffer_load_dwordx2 {vr(12+2*rt16,2)}, v11, s[64:67], 0 offen offset:{256*rt16}')
    A('s_waitcnt vmcnt(20)')
    A('s_barrier')
    stamp(A, 2)
    BF = 16; ACC = 112
    lg = Cnt(A, 'lgkmcnt', 15)
    def bread(ks):
        for rt16 in range(2):
            lg.issue(f'ds_read_b128 {vr(BF + 8*(ks % 3) + 4*rt16, 4)}, v10 offset:{(2*ks+rt16)*1024}', ks)
    bread(0); bread(1)
    A('s_waitcnt vmcnt(0)')
    for ks in range(18):
        if ks + 2 < 18: bread(ks+2)
        lg.wait([ks])
        for rt16 in range(2):
            c = '0' if ks == 0 else vr(ACC+4*rt16, 4)
            A(f'v_mfma_f32_16x16x32_bf16 {vr(ACC+4*rt16,4)}, {vr(WF+4*ks,4)}, {vr(BF+8*(ks%3)+4*rt16,4)}, {c}')
    stamp(A, 3)
    for rt16 in range(2):
        for e in range(4): unpack(A, BF+4*rt16+e, 12+2*rt16+(e >> 1), e & 1)
    A('s_nop 1')
    for rt16 in range(2):
        for e in range(4): A(f'v_add_f32 v{BF+4*rt16+e}, v{BF+4*rt16+e}, v{ACC+4*rt16+e}')
        o = BF + 8 + 2*rt16
        A(f'v_cvt_pk_bf16_f32 v{o}, v{BF+4*rt16}, v{BF+4*rt16+1}'); A(f'v_cvt_pk_bf16_f32 v{o+1}, v{BF+4*rt16+2}, v{BF+4*rt16+3}')
        A(f'buffer_store_dwordx2 {vr(o,2)}, v11, s[72:75], 0 offen offset:{256*rt16}')
    stamp(A, 4); A('s_waitcnt vmcnt(0)') if PROF else None; stamp(A, 5); stamps_out(A, 3)
    A.label('K4_END'); A('s_endpgm')
    return (name, n, 576, 36*1024, 128, None)

KERNELS = [k1, k2, k3, k4]

def build(kernels, out):
    A = Asm(); meta = []
    for k in kernels: meta.append(k(A))
    hdr = open('adaLN_cond__ssm_conv_h3__mixer_s_mlp__prompt.s.ref').read().split('; Override')[0]
    hdr += ''.join(f'; @launch kernel={n} grid=({g},1,1) block=({b},1,1) lds={lds}\n' for (n, g, b, lds, vg, acc) in meta)
    hdr += '.amdgcn_target "amdgcn-amd-amdhsa--gfx950"\n'
    t = hdr + A.text() + ''.join(kernel_desc(n, vg, 102, accum=acc) for (n, g, b, lds, vg, acc) in meta)
    open(out, 'w').write(t)
if __name__ == '__main__':
    build(KERNELS, sys.argv[1] if len(sys.argv) > 1 else 'pipe.s')
```
